```python
import torch

def _softmax(x, axis=-1):
    return torch.softmax(x, dim=axis)
def _gelu(x):
    return torch.nn.functional.gelu(x, approximate="tanh")
def _silu(x):
    return torch.nn.functional.silu(x)
def _sigmoid(x):
    return torch.sigmoid(x)
def _layernorm(x, axis=-1, eps=1e-5):
    m = x.mean(dim=axis, keepdim=True)
    v = x.var(dim=axis, keepdim=True, unbiased=False)
    return (x - m) / torch.sqrt(v + eps)
def _scatter_add(tgt, idx, src, axis=0):
    return tgt.clone().index_add_(axis, idx, src)
def _segment_sum(src, seg, n):
    out = torch.zeros((n,) + src.shape[1:], dtype=src.dtype)
    return out.index_add_(0, seg, src)
def _pad(x, pw):
    flat = tuple(v for pair in reversed(pw) for v in pair)
    return torch.nn.functional.pad(x, flat)

kernel_name = 'gated_mix__ssm_conv_s5__glu_gated_swiglu__prompt'

def setup_inputs():

    _w = (lambda a: (lambda t: t.to(torch.bfloat16) if t.is_floating_point() else t)(torch.as_tensor(a)))
    def _A_setup():
        B, S, D = 1, 2048, 640
        P = D
        Lambda_re = -0.5 * (lambda _x: torch.exp(torch.as_tensor(_x)))((lambda *s: torch.randn(*s, dtype=torch.bfloat16) * 0.2)(P))
        Lambda_im = (lambda *s: torch.randn(*s, dtype=torch.bfloat16) * 0.4)(P) * 1.0
        B_re = (lambda *s: torch.randn(*s, dtype=torch.bfloat16) * 0.2)(P, D) * (D ** -0.5)
        B_im = (lambda *s: torch.randn(*s, dtype=torch.bfloat16) * 0.2)(P, D) * (D ** -0.5)
        C_re = (lambda *s: torch.randn(*s, dtype=torch.bfloat16) * 0.2)(D, P) * (P ** -0.5)
        C_im = (lambda *s: torch.randn(*s, dtype=torch.bfloat16) * 0.2)(D, P) * (P ** -0.5)
        log_dt = (lambda *s: torch.randn(*s, dtype=torch.bfloat16) * 0.2)(P) * 0.3 - 2.0
        Dskip = (lambda *s: torch.randn(*s, dtype=torch.bfloat16) * 0.05)(D)
        return {
            "x": _w((lambda *s: torch.randn(*s, dtype=torch.bfloat16) * 0.05)(B, S, D)),
            "Lambda_re": _w(Lambda_re),
            "Lambda_im": _w(Lambda_im),
            "B_re": _w(B_re),
            "B_im": _w(B_im),
            "C_re": _w(C_re),
            "C_im": _w(C_im),
            "log_dt": _w(log_dt),
            "Dskip": _w(Dskip),
        }
    _A_in = _A_setup()

    def _B_setup():
        B, S, D, F = 1, 2048, 640, 1728
        return {
            "x": _w((lambda *s: torch.randn(*s, dtype=torch.bfloat16) * 0.05)(B, S, D)),
            "w1": _w((lambda *s: torch.randn(*s, dtype=torch.bfloat16) * 0.8)(D, F) * (2.0 / D) ** 0.5),
            "w3": _w((lambda *s: torch.randn(*s, dtype=torch.bfloat16) * 0.8)(D, F) * (2.0 / D) ** 0.5),
            "w2": _w((lambda *s: torch.randn(*s, dtype=torch.bfloat16) * 0.8)(F, D) * (2.0 / F) ** 0.5),
        }
    _B_in = _B_setup()

    return {
        "A_x": _A_in["x"],
        "A_Lambda_re": _A_in["Lambda_re"],
        "A_Lambda_im": _A_in["Lambda_im"],
        "A_B_re": _A_in["B_re"],
        "A_B_im": _A_in["B_im"],
        "A_C_re": _A_in["C_re"],
        "A_C_im": _A_in["C_im"],
        "A_log_dt": _A_in["log_dt"],
        "A_Dskip": _A_in["Dskip"],
        "B_x": _B_in["x"],
        "B_w1": _B_in["w1"],
        "B_w3": _B_in["w3"],
        "B_w2": _B_in["w2"],
        "gate_w": _w((lambda *s: torch.randn(*s, dtype=torch.bfloat16) * 0.05)(640) * 16.0),
    }

def reference(A_x, A_Lambda_re, A_Lambda_im, A_B_re, A_B_im, A_C_re, A_C_im, A_log_dt, A_Dskip, B_x, B_w1, B_w3, B_w2, gate_w):
    def _A_ref(x, Lambda_re, Lambda_im, B_re, B_im, C_re, C_im, log_dt, Dskip):
        Bsz, L, H = x.shape
        Lam = Lambda_re + 1j * Lambda_im
        Bmat = B_re + 1j * B_im
        Cmat = C_re + 1j * C_im
        dt = torch.exp(log_dt)
        Lam_bar = torch.exp(dt * Lam)
        B_bar = ((Lam_bar - 1.0) / Lam)[:, None] * Bmat
        Bu = torch.einsum("bld,pd->blp", x + 0j, B_bar)
        h = torch.zeros_like(Bu[:, 0, :])
        hs = []
        for t in range(L):
            h = Lam_bar[None, :] * h + Bu[:, t, :]
            hs.append(h)
        hseq = torch.stack(hs, 1)
        y = 2.0 * torch.einsum("blp,dp->bld", hseq, Cmat).real + x * Dskip[None, None, :]
        return y

    def _B_ref(x, w1, w3, w2):
        gate = torch.einsum("bsd,df->bsf", x, w1)
        up = torch.einsum("bsd,df->bsf", x, w3)
        h = _silu(gate) * up
        out = torch.einsum("bsf,fd->bsd", h, w2)
        return out

    x = A_x
    g = _sigmoid((x * gate_w).sum(-1, keepdims=True))
    a = _A_ref(x, A_Lambda_re, A_Lambda_im, A_B_re, A_B_im, A_C_re, A_C_im, A_log_dt, A_Dskip)
    b = _B_ref(x, B_w1, B_w3, B_w2)
    return g * a + (1 - g) * b
```

```python
import re

REG_RE = re.compile(r'^(-|abs\()?([vas])(\d+)\)?$')
RNG_RE = re.compile(r'^(-|abs\()?([vas])\[(\d+):(\d+)\]\)?$')

def regs_of(tok):
    tok = tok.strip()
    m = REG_RE.match(tok)
    if m:
        return {(m.group(2), int(m.group(3)))}
    m = RNG_RE.match(tok)
    if m:
        return {(m.group(2), i) for i in range(int(m.group(3)), int(m.group(4)) + 1)}
    if tok in ('vcc', 'vcc_lo', 'vcc_hi'):
        return {('x', 'vcc')}
    if tok in ('exec', 'exec_lo', 'exec_hi'):
        return {('x', 'exec')}
    if tok == 'm0':
        return {('x', 'm0')}
    return set()

TRANS = ('v_exp_f32', 'v_log_f32', 'v_rcp_f32', 'v_rsq_f32', 'v_sqrt_f32', 'v_sin_f32', 'v_cos_f32', 'v_rcp_iflag_f32')
S_NODST = ('s_cmp', 's_waitcnt', 's_barrier', 's_branch', 's_cbranch', 's_nop', 's_sleep', 's_setprio', 's_endpgm', 's_bitcmp')

class Ins:
    __slots__ = ('text', 'mn', 'kind', 'rd', 'wr', 'passes', 'A', 'B', 'C', 'D', 'ws', 'data', 'wide', 'dpp', 'ldsdma', 'lanesel')
    def __init__(self, text):
        self.text = text
        body = text.split(';')[0].strip()
        parts = body.split(None, 1)
        mn = parts[0]
        self.mn = mn
        rest = parts[1] if len(parts) > 1 else ''
        ops = []
        depth = 0; cur = ''
        for ch in rest:
            if ch in '[(':
                depth += 1
            if ch in '])':
                depth -= 1
            if ch == ',' and depth == 0:
                ops.append(cur.strip()); cur = ''
            else:
                cur += ch
        if cur.strip():
            ops.append(cur.strip())
        mods = ''
        if ops:
            sp = ops[-1].split(None, 1)
            ops[-1] = sp[0]
            if len(sp) > 1:
                mods = sp[1]
        self.rd = set(); self.wr = set(); self.passes = 0
        self.A = self.B = self.C = self.D = set()
        self.ws = 1; self.data = set(); self.wide = False
        self.dpp = ('row_' in mods or 'quad_perm' in mods or 'wave_' in mods or mn.endswith('_dpp'))
        self.ldsdma = False; self.lanesel = set()
        R = [regs_of(o) for o in ops]
        if mn.startswith('v_mfma'):
            self.kind = 'mfma'
            self.D, self.A, self.B, self.C = R[0], R[1], R[2], R[3]
            self.wr = set(self.D); self.rd = self.A | self.B | self.C
            if '32x32x16' in mn: self.passes = 8
            elif '16x16x32' in mn: self.passes = 4
            else: raise ValueError(mn)
        elif mn.startswith('v_'):
            self.kind = 'trans' if any(mn.startswith(t) for t in TRANS) else 'valu'
            self.wr = set(R[0])
            k = 1
            if '_co_' in mn:
                self.wr |= R[1]; k = 2
            for r in R[k:]:
                self.rd |= r
            if mn.startswith(('v_fmac', 'v_dot2c', 'v_pk_fmac', 'v_writelane')):
                self.rd |= R[0]
            if mn.startswith('v_permlane') and 'swap' in mn:
                self.rd |= R[0]; self.wr |= R[1]
            if mn.startswith('v_cmpx'):
                self.wr |= {('x', 'exec')}
            if mn.startswith(('v_readlane', 'v_writelane')) and len(R) > 2:
                self.lanesel = R[2]
            if self.dpp:
                self.rd |= R[0]
        elif mn.startswith(('s_load', 's_memtime', 's_memrealtime', 's_buffer_load')):
            self.kind = 'smem'
            self.wr = set(R[0])
            for r in R[1:]: self.rd |= r
        elif mn.startswith('s_'):
            self.kind = 'salu'
            if mn == 's_nop':
                self.ws = int(ops[0], 0) + 1
            if any(mn.startswith(t) for t in S_NODST):
                for r in R: self.rd |= r
            else:
                self.wr = set(R[0])
                for r in R[1:]: self.rd |= r
                if 'saveexec' in mn:
                    self.wr |= {('x', 'exec')}
        elif mn.startswith(('buffer_', 'global_')):
            self.kind = 'vmem'
            if mn.startswith(('buffer_wbl2', 'buffer_inv')):
                pass
            elif 'load' in mn:
                if re.search(r'\blds\b', mods) or 'load_lds' in mn:
                    self.ldsdma = True
                    for r in R: self.rd |= r
                    self.rd |= {('x', 'm0')}
                else:
                    self.wr = set(R[0])
                    for r in R[1:]: self.rd |= r
            else:
                for r in R: self.rd |= r
                if mn.startswith('buffer_'):
                    self.data = R[0]
                else:
                    self.data = R[1]
                self.wide = ('x4' in mn or 'x3' in mn)
                if 'atomic' in mn and 'sc0' in mods:
                    self.wr = set(R[0])
        elif mn.startswith('ds_'):
            self.kind = 'ds'
            if mn.startswith(('ds_read', 'ds_bpermute', 'ds_permute', 'ds_swizzle')):
                self.wr = set(R[0])
                for r in R[1:]: self.rd |= r
            else:
                for r in R: self.rd |= r
        else:
            raise ValueError('unknown instr: ' + text)

def isv(rs):
    return {r for r in rs if r[0] in 'va'}
def iss(rs):
    return {r for r in rs if r[0] == 's' or r == ('x', 'vcc')}

def need(p, c):
    n = 0
    pv = p.kind in ('valu', 'trans'); cv = c.kind in ('valu', 'trans')
    if pv:
        w = isv(p.wr)
        if c.kind == 'mfma' and (w & c.rd): n = max(n, 2)
        if cv and c.dpp and (w & c.rd): n = max(n, 2)
        if cv and c.mn.startswith(('v_readlane', 'v_readfirstlane')) and (w & c.rd): n = max(n, 1)
        if cv and c.mn.startswith('v_permlane') and (w & c.rd): n = max(n, 2)
        if p.kind == 'trans' and c.kind in ('valu',) and (w & c.rd): n = max(n, 1)
        if p.kind == 'trans' and c.kind in ('trans',) and (w & c.rd): n = max(n, 1)
        ws = iss(p.wr)
        if ws:
            if c.kind == 'vmem' and (ws & c.rd): n = max(n, 5)
            if cv and (ws & c.rd): n = max(n, 2)
            if cv and (ws & c.lanesel): n = max(n, 4)
            if c.kind in ('salu', 'smem') and (ws & c.rd): n = max(n, 1)
        if ('x', 'exec') in p.wr:
            if c.kind == 'mfma': n = max(n, 4)
            if cv and c.dpp: n = max(n, 5)
            if cv and c.mn.startswith(('v_readlane', 'v_readfirstlane', 'v_writelane', 'v_permlane')): n = max(n, 4)
    if p.kind == 'mfma':
        big = {4: 8, 8: 12}[p.passes]
        if c.kind == 'mfma':
            if p.D & (c.A | c.B): n = max(n, big)
            if p.D & c.C:
                if not (p.D == c.C and p.passes == c.passes): n = max(n, big - 2)
            elif p.D & c.D:
                n = max(n, big - 2)
        elif cv:
            if p.D & (c.rd | c.wr): n = max(n, big)
            if p.C & c.wr: n = max(n, {4: 3, 8: 7}[p.passes])
        elif c.kind in ('vmem', 'ds'):
            if p.D & (c.rd | c.wr): n = max(n, big)
            if p.C & c.wr: n = max(n, {4: 3, 8: 7}[p.passes])
    if p.kind == 'salu' and ('x', 'm0') in p.wr and c.ldsdma: n = max(n, 1)
    if p.kind == 'vmem' and p.wide and p.data:
        if cv and (p.data & c.wr): n = max(n, 2)
        elif p.data & c.wr: n = max(n, 1)
    return n

class Prog:
    def __init__(self):
        self.items = []
    def I(self, text):
        self.items.append(Ins(text))
    def __call__(self, text):
        for ln in text.strip().split('\n'):
            ln = ln.strip()
            if not ln: continue
            if ln.startswith(';') or ln.endswith(':') or ln.startswith('.'):
                self.items.append(ln)
            else:
                self.I(ln)
    def label(self, name):
        self.items.append(name + ':')
    def raw(self, s):
        self.items.append(s)
    def render(self):
        out = []
        hist = []
        npad = 0
        for it in self.items:
            if isinstance(it, str):
                out.append(it)
                continue
            dist = 0; pad = 0
            for p in reversed(hist):
                if dist >= 13: break
                n = need(p, it)
                if n > dist: pad = max(pad, n - dist)
                dist += p.ws
            while pad > 0:
                k = min(pad, 16)
                nop = Ins('s_nop %d' % (k - 1))
                hist.append(nop); out.append('    ' + nop.text); pad -= k; npad += 1
            hist.append(it)
            if len(hist) > 32: hist = hist[-32:]
            out.append('    ' + it.text)
        self.npad = npad
        return '\n'.join(out) + '\n'
```

```python
import sys
from asmlib import Prog
NAME = 'gated_mix__ssm_conv_s5__glu_gated_swiglu__prompt'
HEAD = open('cdna_kernels/%s.s.ref' % NAME).read().split('; Override launch')[0]

DMA_EVERY = int(sys.argv[2]) if len(sys.argv) > 2 else 3
NO_DMA = False
NO_LDS = False
GR = int(sys.argv[3])
XFIRST = int(sys.argv[4])
NT = int(sys.argv[5])

P = Prog()
XREG, WREG = 0, 98304
XSLOT, WSLOT = 8192, 20480
ACC = 96
def acc(j, r): b = ACC + (j * 2 + r) * 16; return 'v[%d:%d]' % (b, b + 15)
def fr(st, idx): b = 40 + st * 28 + idx * 4; return b
def q(b): return 'v[%d:%d]' % (b, b + 3)
nst = [0]
def stamp():
    i = nst[0]; nst[0] += 1
    P('s_memtime s[%d:%d]' % (64 + 2 * i, 65 + 2 * i))

P('''
s_cmp_ge_u32 s2, 256
s_cbranch_scc1 L_end
s_load_dwordx16 s[64:79], s[0:1], 0
s_load_dwordx16 s[80:95], s[0:1], 64
s_load_dwordx2 s[96:97], s[0:1], 128
s_memrealtime s[98:99]
s_memtime s[100:101]
v_and_b32 v1, 63, v0
v_lshrrev_b32 v2, 6, v0
s_and_b32 s3, s2, 7
s_lshr_b32 s7, s2, 3
v_readfirstlane_b32 s4, v2
s_and_b32 s5, s3, 1
s_lshl_b32 s5, s5, 2
s_and_b32 s6, s7, 3
s_add_u32 s5, s5, s6
s_mov_b32 s52, s6
s_lshr_b32 s6, s3, 1
s_lshr_b32 s7, s7, 2
s_add_u32 s52, s52, s7
s_lshl_b32 s7, s7, 2
s_add_u32 s6, s6, s7
s_min_u32 s6, s6, 26
''')
if GR == 1: P('s_mov_b32 s53, 0')
elif GR == 2: P('s_and_b32 s53, s52, 1'); P('s_mul_i32 s53, s53, 5')
elif GR == 3:
    P('s_mul_i32 s53, s52, 43'); P('s_lshr_b32 s53, s53, 7'); P('s_mul_i32 s53, s53, 3'); P('s_sub_u32 s53, s52, s53'); P('s_mul_i32 s53, s53, 3')
elif GR == 4:
    P('s_and_b32 s53, s52, 3'); P('s_mul_i32 s53, s53, 5'); P('s_lshr_b32 s53, s53, 1')
elif GR == 5:
    P('s_mul_i32 s53, s52, 13'); P('s_lshr_b32 s53, s53, 6'); P('s_mul_i32 s53, s53, 5'); P('s_sub_u32 s53, s52, s53'); P('s_lshl_b32 s53, s53, 1')

P('''
v_lshrrev_b32 v20, 5, v1
v_lshlrev_b32 v20, 5, v20
v_bfe_u32 v21, v1, 3, 2
v_add_u32 v20, v20, v21
s_lshl_b32 s3, s5, 8
s_lshl_b32 s7, s4, 6
s_add_u32 s3, s3, s7
v_add_u32 v20, s3, v20
v_mul_u32_u24 v20, 1280, v20
v_and_b32 v21, 7, v1
v_lshrrev_b32 v22, 4, v1
v_xor_b32 v21, v21, v22
v_lshlrev_b32 v22, 4, v21
v_xor_b32 v23, 64, v22
v_add_u32 v22, v20, v22
v_add_u32 v23, v20, v23
''')
for n in range(8):
    P('v_add_u32 v%d, %d, v%d' % (2 + n, n * 5120 - (n & 3) * 1024, 22 + (n & 1)))
P('''
v_lshrrev_b32 v20, 3, v1
s_lshl_b32 s3, s4, 4
v_add_u32 v20, s3, v20
v_mul_u32_u24 v20, 3456, v20
v_bfe_u32 v21, v1, 4, 1
v_lshlrev_b32 v21, 2, v21
v_and_b32 v22, 7, v1
v_xor_b32 v21, v21, v22
v_lshlrev_b32 v21, 4, v21
v_add_u32 v20, v20, v21
s_lshl_b32 s3, s6, 7
v_add_u32 v10, s3, v20
v_add_u32 v11, %d, v10
''' % (8 * 3456 - 1024))
P('''
s_and_b32 s3, s4, 1
s_lshl_b32 s7, s3, 3
s_lshl_b32 s56, s6, 4
s_add_u32 s7, s7, s56
v_lshrrev_b32 v20, 3, v1
v_add_u32 v20, s7, v20
v_mul_u32_u24 v20, 1280, v20
v_and_b32 v21, 7, v1
v_lshrrev_b32 v22, 4, v1
v_xor_b32 v21, v21, v22
s_lshl_b32 s3, s3, 2
v_xor_b32 v21, s3, v21
v_lshlrev_b32 v21, 4, v21
v_add_u32 v12, v20, v21
''')
P('''
v_and_b32 v20, 31, v1
v_lshrrev_b32 v21, 5, v1
v_bfe_u32 v22, v1, 1, 3
v_xor_b32 v21, v21, v22
v_lshlrev_b32 v20, 7, v20
s_mul_i32 s3, s4, 24576
''')
for ks in range(4):
    P('v_xor_b32 v22, %d, v21' % (2 * ks))
    P('v_lshl_add_u32 v22, v22, 4, v20')
    P('v_add_u32 v%d, s3, v22' % (13 + ks))
    P('v_add_u32 v%d, %d, v22' % (24 + ks, WREG + 16384))
P('''
v_lshrrev_b32 v20, 5, v1
v_lshlrev_b32 v20, 3, v20
v_bfe_u32 v21, v1, 2, 2
v_add_u32 v20, v20, v21
v_lshlrev_b32 v20, 7, v20
v_bfe_u32 v21, v1, 4, 1
v_lshl_add_u32 v20, v21, 5, v20
v_and_b32 v21, 3, v1
v_lshl_add_u32 v20, v21, 3, v20
v_bfe_u32 v21, v1, 3, 1
v_lshlrev_b32 v21, 6, v21
v_add_u32 v20, %d, v20
v_add_u32 v28, v20, v21
v_xor_b32 v21, 64, v21
v_add_u32 v29, v20, v21
''' % WREG)
def srd(d, ptr, nbytes):
    P('s_mov_b32 s%d, s%d' % (d, 64 + 2 * ptr)); P('s_mov_b32 s%d, s%d' % (d + 1, 65 + 2 * ptr))
    P('s_mov_b32 s%d, %d' % (d + 2, nbytes)); P('s_mov_b32 s%d, 0x20000' % (d + 3))
P('s_waitcnt lgkmcnt(0)')
srd(8, 0, 2048 * 1280); srd(12, 10, 640 * 3456); srd(16, 11, 640 * 3456); srd(32, 16, 268435456)
P('''
s_cmp_lt_u32 s4, 2
s_cselect_b32 s20, s70, s72
s_cselect_b32 s21, s71, s73
s_mov_b32 s22, %d
s_mov_b32 s23, 0x20000
s_mul_i32 s57, s4, 24576
s_lshl_b32 s58, s4, 11
s_add_u32 s58, s58, %d
s_lshl_b32 s59, s4, 10
s_add_u32 s59, s59, %d
s_lshl_b32 s60, s53, 7
s_mul_i32 s61, s53, %d
''' % (640 * 1280, WREG, WREG + 16384, 64 * 3456))
def dma_stage(st):
    sl = st % 3
    g = []
    g.append(['s_add_u32 m0, s58, %d' % (sl * WSLOT), 'buffer_load_dwordx4 v10, s[12:15], s61 offen lds'])
    g.append(['buffer_load_dwordx4 v11, s[12:15], s61 offen offset:1024 lds'])
    g.append(['s_add_u32 m0, s58, %d' % (sl * WSLOT + 8192), 'buffer_load_dwordx4 v10, s[16:19], s61 offen lds'])
    g.append(['buffer_load_dwordx4 v11, s[16:19], s61 offen offset:1024 lds'])
    g.append(['s_add_u32 m0, s59, %d' % (sl * WSLOT), 'buffer_load_dwordx4 v12, s[20:23], s60 offen lds'])
    for n in range(8):
        l = []
        if n % 4 == 0: l.append('s_add_u32 m0, s57, %d' % (sl * XSLOT + (n >> 2) * 4096))
        off = (n & 3) * 1024
        l.append('buffer_load_dwordx4 v%d, s[8:11], s60 offen%s lds' % (2 + n, (' offset:%d' % off) if off else ''))
        g.append(l)
    for gi, l in enumerate(g):
        if (NT & 1 and gi < 5) or (NT & 2 and gi >= 5):
            g[gi] = [i.replace(' lds', ' nt lds') for i in l]
    if XFIRST: g = g[5:] + g[:5]
    g[-1] += ['s_add_u32 s60, s60, 128', 's_add_u32 s61, s61, %d' % (64 * 3456), 's_cmp_ge_u32 s60, 1280', 's_cmov_b32 s60, 0', 's_cmov_b32 s61, 0']
    return g
def reads(st, ks):
    sl = st % 3; fs = ks & 1
    r = []
    r.append('ds_read_b128 %s, v%d offset:%d' % (q(fr(fs, 0)), 13 + ks, sl * XSLOT))
    for j in range(4):
        ct = j & 1; mat = j >> 1
        for s in range(2):
            b = fr(fs, 2 + j) + 2 * s
            r.append('ds_read_b64_tr_b16 v[%d:%d], v%d offset:%d' % (b, b + 1, 28 + ct, sl * WSLOT + mat * 8192 + (16 * ks + 4 * s) * 128))
        if j == 0:
            r.append('ds_read_b128 %s, v%d offset:%d' % (q(fr(fs, 1)), 13 + ks, sl * XSLOT + 4096))
    r.append('ds_read_b128 %s, v%d offset:%d' % (q(fr(fs, 6)), 24 + ks, sl * WSLOT))
    return r
def mfmas(st, ks):
    fs = ks & 1; m = []
    for j in range(5):
        for r in range(2):
            c = '0' if (st == 0 and ks == 0) else acc(j, r)
            if j < 4: m.append('v_mfma_f32_32x32x16_bf16 %s, %s, %s, %s' % (acc(j, r), q(fr(fs, 2 + j)), q(fr(fs, r)), c))
            else: m.append('v_mfma_f32_32x32x16_bf16 %s, %s, %s, %s' % (acc(j, r), q(fr(fs, r)), q(fr(fs, 6)), c))
    return m
for st in range(2):
    for g in dma_stage(st):
        for i in g: P(i)
P('s_waitcnt vmcnt(13)')
P('s_barrier')
stamp()
for i in reads(0, 0): P(i)
dq = dma_stage(2)
NST = 10
cnt = 0
for st in range(NST):
    for ks in range(4):
        P('s_waitcnt lgkmcnt(0)')
        ms = mfmas(st, ks)
        if ks < 3: rd = reads(st, ks + 1)
        elif st + 1 < NST: rd = reads(st + 1, 0)
        else: rd = []
        if NO_LDS: rd = []
        for mi, m in enumerate(ms):
            P(m)
            if ks == 3 and mi == 0 and st + 1 < NST:
                assert not dq
                P('s_waitcnt vmcnt(%d)' % (13 if (st + 2 < NST and not NO_DMA) else 0))
                P('s_barrier')
                if st + 3 < NST and not NO_DMA: dq = dma_stage(st + 3)
                cnt = 0
                stamp()
            for _ in range(2):
                if rd: P(rd.pop(0))
            cnt += 1
            if dq and cnt % DMA_EVERY == 0:
                for i in dq.pop(0): P(i)
stamp()
P('s_waitcnt lgkmcnt(0)')
P('s_lshl_b32 s3, s2, 3')
P('s_add_u32 s3, s3, s4')
P('s_lshl_b32 s3, s3, 7')
P('s_add_u32 s3, s3, %d' % (200 << 20))
P('v_mov_b32 v40, s3')
vals = ['s98', 's100'] + ['s%d' % (64 + 2 * i) for i in range(nst[0])]
for i, s in enumerate(vals):
    P('v_mov_b32 v41, %s' % s)
    P('buffer_store_dword v41, v40, s[32:35], 0 offen offset:%d' % (4 * i))
P('v_add_f32 v41, v96, v255')
P('buffer_store_dword v41, v40, s[32:35], 0 offen offset:120')
P('s_waitcnt vmcnt(0)')
P.label('L_end')
P('s_endpgm')
body = P.render()
src = HEAD + '; @launch grid=(256,1,1) block=(256,1,1) lds=163840\n' + '''.amdgcn_target "amdgcn-amd-amdhsa--gfx950"
.text
.globl %s_kernel
.p2align 8
.type %s_kernel,@function
%s_kernel:
''' % (NAME, NAME, NAME) + body + '''.section .rodata,"a"
.p2align 6
.amdhsa_kernel %s_kernel
  .amdhsa_next_free_vgpr 512
  .amdhsa_next_free_sgpr 102
  .amdhsa_accum_offset 256
  .amdhsa_group_segment_fixed_size 0
  .amdhsa_kernarg_size 136
  .amdhsa_user_sgpr_count 2
  .amdhsa_user_sgpr_kernarg_segment_ptr 1
  .amdhsa_system_sgpr_workgroup_id_x 1
.end_amdhsa_kernel
''' % NAME
open(sys.argv[1], 'w').write(src)
print('stamps', nst[0] + 2, 'pads', P.npad)
```

```python
import sys
from asmlib import Prog
NAME = 'gated_mix__ssm_conv_s5__glu_gated_swiglu__prompt'
HEAD = open('cdna_kernels/%s.s.ref' % NAME).read().split('; Override launch')[0]

DMA_EVERY = int(sys.argv[2]) if len(sys.argv) > 2 else 3
GR = int(sys.argv[3])
XFIRST = int(sys.argv[4])
NT = int(sys.argv[5])
MODE = sys.argv[6]
NO_DMA = 'd' in MODE
NO_LDS = 'l' in MODE
S16 = 's' in MODE

P = Prog()
XREG, WREG = 0, 98304
XSLOT, WSLOT = 8192, 20480
ACC = 96
def acc(j, r): b = ACC + (j * 2 + r) * 16; return 'v[%d:%d]' % (b, b + 15)
def fr(st, idx): b = 40 + st * 28 + idx * 4; return b
def q(b): return 'v[%d:%d]' % (b, b + 3)
nst = [0]
def stamp():
    i = nst[0]; nst[0] += 1
    P('s_memrealtime s[%d:%d]' % (64 + 2 * i, 65 + 2 * i))

P('''
s_cmp_ge_u32 s2, 256
s_cbranch_scc1 L_end
s_load_dwordx16 s[64:79], s[0:1], 0
s_load_dwordx16 s[80:95], s[0:1], 64
s_load_dwordx2 s[96:97], s[0:1], 128
s_memrealtime s[98:99]
s_memrealtime s[100:101]
v_and_b32 v1, 63, v0
v_lshrrev_b32 v2, 6, v0
s_and_b32 s3, s2, 7
s_lshr_b32 s7, s2, 3
v_readfirstlane_b32 s4, v2
s_and_b32 s5, s3, 1
s_lshl_b32 s5, s5, 2
s_and_b32 s6, s7, 3
s_add_u32 s5, s5, s6
s_mov_b32 s52, s6
s_lshr_b32 s6, s3, 1
s_lshr_b32 s7, s7, 2
s_add_u32 s52, s52, s7
s_lshl_b32 s7, s7, 2
s_add_u32 s6, s6, s7
s_min_u32 s6, s6, 26
''')
if GR == 1: P('s_mov_b32 s53, 0')
elif GR == 2: P('s_and_b32 s53, s52, 1'); P('s_mul_i32 s53, s53, 5')
elif GR == 3:
    P('s_mul_i32 s53, s52, 43'); P('s_lshr_b32 s53, s53, 7'); P('s_mul_i32 s53, s53, 3'); P('s_sub_u32 s53, s52, s53'); P('s_mul_i32 s53, s53, 3')
elif GR == 4:
    P('s_and_b32 s53, s52, 3'); P('s_mul_i32 s53, s53, 5'); P('s_lshr_b32 s53, s53, 1')
elif GR == 5:
    P('s_mul_i32 s53, s52, 13'); P('s_lshr_b32 s53, s53, 6'); P('s_mul_i32 s53, s53, 5'); P('s_sub_u32 s53, s52, s53'); P('s_lshl_b32 s53, s53, 1')

P('''
v_lshrrev_b32 v20, 5, v1
v_lshlrev_b32 v20, 5, v20
v_bfe_u32 v21, v1, 3, 2
v_add_u32 v20, v20, v21
s_lshl_b32 s3, s5, 8
s_lshl_b32 s7, s4, 6
s_add_u32 s3, s3, s7
v_add_u32 v20, s3, v20
v_mul_u32_u24 v20, 1280, v20
v_and_b32 v21, 7, v1
v_lshrrev_b32 v22, 4, v1
v_xor_b32 v21, v21, v22
v_lshlrev_b32 v22, 4, v21
v_xor_b32 v23, 64, v22
v_add_u32 v22, v20, v22
v_add_u32 v23, v20, v23
''')
for n in range(8):
    P('v_add_u32 v%d, %d, v%d' % (2 + n, n * 5120 - (n & 3) * 1024, 22 + (n & 1)))
P('''
v_lshrrev_b32 v20, 3, v1
s_lshl_b32 s3, s4, 4
v_add_u32 v20, s3, v20
v_mul_u32_u24 v20, 3456, v20
v_bfe_u32 v21, v1, 4, 1
v_lshlrev_b32 v21, 2, v21
v_and_b32 v22, 7, v1
v_xor_b32 v21, v21, v22
v_lshlrev_b32 v21, 4, v21
v_add_u32 v20, v20, v21
s_lshl_b32 s3, s6, 7
v_add_u32 v10, s3, v20
v_add_u32 v11, %d, v10
''' % (8 * 3456 - 1024))
P('''
s_and_b32 s3, s4, 1
s_lshl_b32 s7, s3, 3
s_lshl_b32 s56, s6, 4
s_add_u32 s7, s7, s56
v_lshrrev_b32 v20, 3, v1
v_add_u32 v20, s7, v20
v_mul_u32_u24 v20, 1280, v20
v_and_b32 v21, 7, v1
v_lshrrev_b32 v22, 4, v1
v_xor_b32 v21, v21, v22
s_lshl_b32 s3, s3, 2
v_xor_b32 v21, s3, v21
v_lshlrev_b32 v21, 4, v21
v_add_u32 v12, v20, v21
''')
P('''
v_and_b32 v20, 31, v1
v_lshrrev_b32 v21, 5, v1
v_bfe_u32 v22, v1, 1, 3
v_xor_b32 v21, v21, v22
v_lshlrev_b32 v20, 7, v20
s_mul_i32 s3, s4, 24576
''')
for ks in range(4):
    P('v_xor_b32 v22, %d, v21' % (2 * ks))
    P('v_lshl_add_u32 v22, v22, 4, v20')
    P('v_add_u32 v%d, s3, v22' % (13 + ks))
    P('v_add_u32 v%d, %d, v22' % (24 + ks, WREG + 16384))
P('''
v_lshrrev_b32 v20, 5, v1
v_lshlrev_b32 v20, 3, v20
v_bfe_u32 v21, v1, 2, 2
v_add_u32 v20, v20, v21
v_lshlrev_b32 v20, 7, v20
v_bfe_u32 v21, v1, 4, 1
v_lshl_add_u32 v20, v21, 5, v20
v_and_b32 v21, 3, v1
v_lshl_add_u32 v20, v21, 3, v20
v_bfe_u32 v21, v1, 3, 1
v_lshlrev_b32 v21, 6, v21
v_add_u32 v20, %d, v20
v_add_u32 v28, v20, v21
v_xor_b32 v21, 64, v21
v_add_u32 v29, v20, v21
''' % WREG)
def srd(d, ptr, nbytes):
    P('s_mov_b32 s%d, s%d' % (d, 64 + 2 * ptr)); P('s_mov_b32 s%d, s%d' % (d + 1, 65 + 2 * ptr))
    P('s_mov_b32 s%d, %d' % (d + 2, nbytes)); P('s_mov_b32 s%d, 0x20000' % (d + 3))
P('s_waitcnt lgkmcnt(0)')
srd(8, 0, 2048 * 1280); srd(12, 10, 640 * 3456); srd(16, 11, 640 * 3456); srd(32, 16, 268435456)
P('''
s_cmp_lt_u32 s4, 2
s_cselect_b32 s20, s70, s72
s_cselect_b32 s21, s71, s73
s_mov_b32 s22, %d
s_mov_b32 s23, 0x20000
s_mul_i32 s57, s4, 24576
s_lshl_b32 s58, s4, 11
s_add_u32 s58, s58, %d
s_lshl_b32 s59, s4, 10
s_add_u32 s59, s59, %d
s_lshl_b32 s60, s53, 7
s_mul_i32 s61, s53, %d
''' % (640 * 1280, WREG, WREG + 16384, 64 * 3456))
def dma_stage(st):
    sl = st % 3
    g = []
    g.append(['s_add_u32 m0, s58, %d' % (sl * WSLOT), 'buffer_load_dwordx4 v10, s[12:15], s61 offen lds'])
    g.append(['buffer_load_dwordx4 v11, s[12:15], s61 offen offset:1024 lds'])
    g.append(['s_add_u32 m0, s58, %d' % (sl * WSLOT + 8192), 'buffer_load_dwordx4 v10, s[16:19], s61 offen lds'])
    g.append(['buffer_load_dwordx4 v11, s[16:19], s61 offen offset:1024 lds'])
    g.append(['s_add_u32 m0, s59, %d' % (sl * WSLOT), 'buffer_load_dwordx4 v12, s[20:23], s60 offen lds'])
    for n in range(8):
        l = []
        if n % 4 == 0: l.append('s_add_u32 m0, s57, %d' % (sl * XSLOT + (n >> 2) * 4096))
        off = (n & 3) * 1024
        l.append('buffer_load_dwordx4 v%d, s[8:11], s60 offen%s lds' % (2 + n, (' offset:%d' % off) if off else ''))
        g.append(l)
    for gi, l in enumerate(g):
        if (NT & 1 and gi < 5) or (NT & 2 and gi >= 5):
            g[gi] = [i.replace(' lds', ' nt lds') for i in l]
    if XFIRST: g = g[5:] + g[:5]
    g[-1] += ['s_add_u32 s60, s60, 128', 's_add_u32 s61, s61, %d' % (64 * 3456), 's_cmp_ge_u32 s60, 1280', 's_cmov_b32 s60, 0', 's_cmov_b32 s61, 0']
    return g
def reads(st, ks):
    sl = st % 3; fs = ks & 1
    r = []
    r.append('ds_read_b128 %s, v%d offset:%d' % (q(fr(fs, 0)), 13 + ks, sl * XSLOT))
    for j in range(4):
        ct = j & 1; mat = j >> 1
        for s in range(2):
            b = fr(fs, 2 + j) + 2 * s
            r.append('ds_read_b64_tr_b16 v[%d:%d], v%d offset:%d' % (b, b + 1, 28 + ct, sl * WSLOT + mat * 8192 + (16 * ks + 4 * s) * 128))
        if j == 0:
            r.append('ds_read_b128 %s, v%d offset:%d' % (q(fr(fs, 1)), 13 + ks, sl * XSLOT + 4096))
    r.append('ds_read_b128 %s, v%d offset:%d' % (q(fr(fs, 6)), 24 + ks, sl * WSLOT))
    return r
def mfmas(st, ks):
    fs = ks & 1; m = []
    for j in range(5):
        for r in range(2):
            c = '0' if (st == 0 and ks == 0) else acc(j, r)
            if S16:
                b = ACC + (j * 2 + r) * 16 + (ks & 1) * 8
                t = []
                for h in range(2):
                    d = 'v[%d:%d]' % (b + 4 * h, b + 4 * h + 3)
                    t.append('v_mfma_f32_16x16x32_bf16 %s, %s, %s, %s' % (d, q(fr(fs, 2 + j)), q(fr(fs ^ h, r)), '0' if (st == 0 and ks < 2) else d))
                m.append('\n'.join(t))
            elif j < 4: m.append('v_mfma_f32_32x32x16_bf16 %s, %s, %s, %s' % (acc(j, r), q(fr(fs, 2 + j)), q(fr(fs, r)), c))
            else: m.append('v_mfma_f32_32x32x16_bf16 %s, %s, %s, %s' % (acc(j, r), q(fr(fs, r)), q(fr(fs, 6)), c))
    return m
for st in range(2):
    for g in dma_stage(st):
        for i in g: P(i)
P('s_waitcnt vmcnt(13)')
P('s_barrier')
stamp()
for i in reads(0, 0): P(i)
dq = dma_stage(2)
NST = 10
cnt = 0
for st in range(NST):
    for ks in range(4):
        P('s_waitcnt lgkmcnt(0)')
        ms = mfmas(st, ks)
        if ks < 3: rd = reads(st, ks + 1)
        elif st + 1 < NST: rd = reads(st + 1, 0)
        else: rd = []
        if NO_LDS and not (st == 0 and ks == 0): rd = []
        for mi, m in enumerate(ms):
            P(m)
            if ks == 3 and mi == 0 and st + 1 < NST:
                assert not dq
                P('s_waitcnt vmcnt(%d)' % (13 if (st + 2 < NST and not NO_DMA) else 0))
                P('s_barrier')
                if st + 3 < NST and not NO_DMA: dq = dma_stage(st + 3)
                cnt = 0
                stamp()
            for _ in range(2):
                if rd: P(rd.pop(0))
            cnt += 1
            if dq and cnt % DMA_EVERY == 0:
                for i in dq.pop(0): P(i)
stamp()
P('s_waitcnt lgkmcnt(0)')
P('s_lshl_b32 s3, s2, 3')
P('s_add_u32 s3, s3, s4')
P('s_lshl_b32 s3, s3, 7')
P('s_add_u32 s3, s3, %d' % (254 << 20))
P('v_mov_b32 v40, s3')
vals = ['s98', 's100'] + ['s%d' % (64 + 2 * i) for i in range(nst[0])]
for i, s in enumerate(vals):
    P('v_mov_b32 v41, %s' % s)
    P('buffer_store_dword v41, v40, s[32:35], 0 offen offset:%d' % (4 * i))
P('v_mov_b32 v41, s%d' % (64 + 2 * (nst[0] - 1)))
P('buffer_store_dword v41, v40, s[32:35], 0 offen offset:124')
P('v_add_f32 v41, v96, v255')
P('buffer_store_dword v41, v40, s[32:35], 0 offen offset:120')
P('s_waitcnt vmcnt(0)')
P.label('L_end')
P('s_endpgm')
body = P.render()
src = HEAD + '; @launch grid=(256,1,1) block=(256,1,1) lds=163840\n' + '''.amdgcn_target "amdgcn-amd-amdhsa--gfx950"
.text
.globl %s_kernel
.p2align 8
.type %s_kernel,@function
%s_kernel:
''' % (NAME, NAME, NAME) + body + '''.section .rodata,"a"
.p2align 6
.amdhsa_kernel %s_kernel
  .amdhsa_next_free_vgpr 512
  .amdhsa_next_free_sgpr 102
  .amdhsa_accum_offset 256
  .amdhsa_group_segment_fixed_size 0
  .amdhsa_kernarg_size 136
  .amdhsa_user_sgpr_count 2
  .amdhsa_user_sgpr_kernarg_segment_ptr 1
  .amdhsa_system_sgpr_workgroup_id_x 1
.end_amdhsa_kernel
''' % NAME
open(sys.argv[1], 'w').write(src)
print('stamps', nst[0] + 2, 'pads', P.npad)
```
